```python
import torch

def _softmax(x, axis=-1):
    return torch.softmax(x, dim=axis)
def _gelu(x):
    return torch.nn.functional.gelu(x, approximate="tanh")
def _silu(x):
    return torch.nn.functional.silu(x)
def _sigmoid(x):
    return torch.sigmoid(x)
def _layernorm(x, axis=-1, eps=1e-5):
    m = x.mean(dim=axis, keepdim=True)
    v = x.var(dim=axis, keepdim=True, unbiased=False)
    return (x - m) / torch.sqrt(v + eps)
def _scatter_add(tgt, idx, src, axis=0):
    return tgt.clone().index_add_(axis, idx, src)
def _segment_sum(src, seg, n):
    out = torch.zeros((n,) + src.shape[1:], dtype=src.dtype)
    return out.index_add_(0, seg, src)
def _pad(x, pw):
    flat = tuple(v for pair in reversed(pw) for v in pair)
    return torch.nn.functional.pad(x, flat)

kernel_name = 'parallel_sum__spectral_fnet__glu_gated_glu__prompt'

def setup_inputs():

    _w = (lambda a: (lambda t: t.to(torch.bfloat16) if t.is_floating_point() else t)(torch.as_tensor(a)))
    def _A_setup():
        B, S, D = 1, 2048, 512
        ns = torch.arange(S)[:, None] * torch.arange(S)[None, :]
        nd = torch.arange(D)[:, None] * torch.arange(D)[None, :]
        Ws_re = torch.cos(-2.0 * torch.pi * ns / S).to(float)
        Ws_im = torch.sin(-2.0 * torch.pi * ns / S).to(float)
        Wd_re = torch.cos(-2.0 * torch.pi * nd / D).to(float)
        Wd_im = torch.sin(-2.0 * torch.pi * nd / D).to(float)
        return {
            "x": _w((lambda *s: torch.randn(*s, dtype=torch.bfloat16) * 0.05)(B, S, D)),
            "dft_seq_re": _w(Ws_re),
            "dft_seq_im": _w(Ws_im),
            "dft_hid_re": _w(Wd_re),
            "dft_hid_im": _w(Wd_im),
        }
    _A_in = _A_setup()

    def _B_setup():
        B, S, D, F = 1, 2048, 512, 1792
        return {
            "x": _w((lambda *s: torch.randn(*s, dtype=torch.bfloat16) * 0.05)(B, S, D)),
            "w_gate": _w((lambda *s: torch.randn(*s, dtype=torch.bfloat16) * 1.6)(D, F)),
            "w_up": _w((lambda *s: torch.randn(*s, dtype=torch.bfloat16) * 0.8)(D, F)),
            "w_down": _w((lambda *s: torch.randn(*s, dtype=torch.bfloat16) * 0.8)(F, D)),
        }
    _B_in = _B_setup()

    return {
        "A_x": _A_in["x"],
        "A_dft_seq_re": _A_in["dft_seq_re"],
        "A_dft_seq_im": _A_in["dft_seq_im"],
        "A_dft_hid_re": _A_in["dft_hid_re"],
        "A_dft_hid_im": _A_in["dft_hid_im"],
        "B_x": _B_in["x"],
        "B_w_gate": _B_in["w_gate"],
        "B_w_up": _B_in["w_up"],
        "B_w_down": _B_in["w_down"],
    }

def reference(A_x, A_dft_seq_re, A_dft_seq_im, A_dft_hid_re, A_dft_hid_im, B_x, B_w_gate, B_w_up, B_w_down):
    def _A_ref(x, dft_seq_re, dft_seq_im, dft_hid_re, dft_hid_im):
        a = torch.einsum("bsd,ed->bse", x, dft_hid_re)
        b = torch.einsum("bsd,ed->bse", x, dft_hid_im)
        y = torch.einsum("ts,bse->bte", dft_seq_re, a) - torch.einsum("ts,bse->bte", dft_seq_im, b)
        return y

    def _B_ref(x, w_gate, w_up, w_down):
        g = torch.einsum("bsd,df->bsf", x, w_gate)
        u = torch.einsum("bsd,df->bsf", x, w_up)
        h = _sigmoid(g) * u
        return torch.einsum("bsf,fd->bsd", h, w_down)

    x = A_x
    xn = _layernorm(x, axis=-1)
    return x + _A_ref(xn, A_dft_seq_re, A_dft_seq_im, A_dft_hid_re, A_dft_hid_im) + _B_ref(xn, B_w_gate, B_w_up, B_w_down)
```

```python
KNAME = "parallel_sum__spectral_fnet__glu_gated_glu__prompt"

class K:
    def __init__(self, name, grid, block, lds, vgpr=256, agpr=0, sgpr=102):
        self.name, self.grid, self.block, self.lds = name, grid, block, lds
        self.vgpr, self.agpr, self.sgpr = vgpr, agpr, sgpr
        self.lines = []
        self.nlabel = 0
    def e(self, s=""):
        for l in s.split("\n"):
            l = l.strip()
            if not l: continue
            if l.endswith(":"):
                self.lines.append(l)
            else:
                self.lines.append("    " + l)
    def label(self, base="L"):
        self.nlabel += 1
        return f"{base}_{self.name}_{self.nlabel}"
    def srd(self, d, base, nbytes):
        self.e(f"s_mov_b32 s{d}, s{base}")
        self.e(f"s_mov_b32 s{d+1}, s{base+1}")
        self.e(f"s_mov_b32 s{d+2}, {nbytes:#x}")
        self.e(f"s_mov_b32 s{d+3}, 0x20000")
    def text(self):
        out = [f".globl {self.name}", ".p2align 8", f".type {self.name},@function", f"{self.name}:"]
        out += self.lines
        return "\n".join(out)
    def desc(self):
        acc = (self.vgpr + 3) // 4 * 4
        nfv = acc + self.agpr if self.agpr else self.vgpr
        return "\n".join([
            ".p2align 6",
            f".amdhsa_kernel {self.name}",
            f"  .amdhsa_next_free_vgpr {nfv}",
            f"  .amdhsa_next_free_sgpr {self.sgpr}",
            f"  .amdhsa_accum_offset {acc}",
            "  .amdhsa_group_segment_fixed_size 0",
            "  .amdhsa_kernarg_size 96",
            "  .amdhsa_user_sgpr_count 2",
            "  .amdhsa_user_sgpr_kernarg_segment_ptr 1",
            "  .amdhsa_system_sgpr_workgroup_id_x 1",
            "  .amdhsa_float_denorm_mode_32 3",
            ".end_amdhsa_kernel"])

def build(kernels, launches=None, header=""):
    launches = launches or kernels
    out = []
    if header:
        out += ["; " + l for l in header.strip().split("\n")]
    for k in launches:
        out.append(f"; @launch kernel={k.name} grid=({k.grid},1,1) block=({k.block},1,1) lds={k.lds}")
    out.append('.amdgcn_target "amdgcn-amd-amdhsa--gfx950"')
    out.append(".text")
    for k in kernels:
        out.append(k.text())
    out.append('.section .rodata,"a"')
    for k in kernels:
        out.append(k.desc())
    return "\n".join(out) + "\n"
```

```python
from asmlib import *
STAMP_OFF = 128 << 20
def spin(ka, ia, kb, ib, wg=0, F=8, wgb=None):
    k = K("spin_kernel", 1, 64, 0, vgpr=16)
    wgb = wg if wgb is None else wgb
    k.e("s_cmp_ge_u32 s2, 1"); k.e("s_cbranch_scc1 END_spin")
    k.e("s_load_dwordx2 s[4:5], s[0:1], 88")
    k.e(f"v_mov_b32 v1, {STAMP_OFF + ka*1024*128 + wg*128 + 8*ia}"); k.e(f"v_mov_b32 v2, {STAMP_OFF + kb*1024*128 + wgb*128 + 8*ib}")
    k.e("s_waitcnt lgkmcnt(0)")
    k.e("global_load_dword v3, v1, s[4:5]"); k.e("global_load_dword v4, v2, s[4:5]")
    k.e("s_waitcnt vmcnt(0)")
    k.e("v_sub_u32 v3, v4, v3"); k.e("v_min_u32 v3, 5000, v3"); k.e(f"v_mul_u32_u24 v3, {F}, v3"); k.e("s_nop 1")
    k.e("v_readfirstlane_b32 s6, v3")
    k.e("s_memrealtime s[8:9]"); k.e("s_waitcnt lgkmcnt(0)")
    k.e("LP_spin:")
    k.e("s_memrealtime s[10:11]"); k.e("s_waitcnt lgkmcnt(0)")
    k.e("s_sub_u32 s12, s10, s8"); k.e("s_cmp_lt_u32 s12, s6"); k.e("s_cbranch_scc1 LP_spin")
    k.e("END_spin:"); k.e("s_endpgm")
    return k

def spin2(ia, opa, ib, opb, F=8, n=192):
    k = K("spin_kernel", 1, 64, 0, vgpr=32)
    k.e("s_cmp_ge_u32 s2, 1"); k.e("s_cbranch_scc1 END_spin")
    k.e("s_load_dwordx2 s[4:5], s[0:1], 88")
    k.e("v_lshlrev_b32 v1, 7, v0"); k.e(f"v_add_u32 v1, {STAMP_OFF}, v1")
    k.e("s_waitcnt lgkmcnt(0)")
    for j in range(n // 64):
        k.e(f"global_load_dword v{4+j}, v1, s[4:5] offset:{8*ia}"); k.e(f"global_load_dword v{8+j}, v1, s[4:5] offset:{8*ib}")
        k.e("v_add_u32 v1, 8192, v1")
    k.e("s_waitcnt vmcnt(0)")
    k.e("v_readfirstlane_b32 s20, v4"); k.e("s_sub_u32 s20, s20, 100000"); k.e("s_nop 2")
    for j in range(n // 64):
        k.e(f"v_subrev_u32 v{4+j}, s20, v{4+j}"); k.e(f"v_subrev_u32 v{8+j}, s20, v{8+j}")
    vop = {"min": "v_min_u32", "max": "v_max_u32", "avg": "v_add_u32"}; sop = {"min": "s_min_u32", "max": "s_max_u32", "avg": "s_add_u32"}
    for j in range(1, n // 64):
        k.e(f"{vop[opa]} v4, v4, v{4+j}"); k.e(f"{vop[opb]} v8, v8, v{8+j}")
    k.e("s_nop 1")
    k.e("v_readlane_b32 s14, v4, 0"); k.e("v_readlane_b32 s15, v8, 0")
    for l in range(1, 64):
        k.e(f"v_readlane_b32 s16, v4, {l}"); k.e(f"v_readlane_b32 s17, v8, {l}"); k.e("s_nop 1")
        k.e(f"{sop[opa]} s14, s14, s16"); k.e(f"{sop[opb]} s15, s15, s17")
    for r, op in ((14, opa), (15, opb)):
        if op == "avg":
            k.e(f"s_mul_hi_u32 s{r}, s{r}, {int(round(F * 2**32 / n))}")
        else: k.e(f"s_mul_i32 s{r}, s{r}, {F}")
    k.e("s_sub_u32 s6, s15, s14"); k.e("s_min_u32 s6, s6, 40000")
    k.e("s_memrealtime s[8:9]"); k.e("s_waitcnt lgkmcnt(0)")
    k.e("LP_spin:")
    k.e("s_memrealtime s[10:11]"); k.e("s_waitcnt lgkmcnt(0)")
    k.e("s_sub_u32 s12, s10, s8"); k.e("s_cmp_lt_u32 s12, s6"); k.e("s_cbranch_scc1 LP_spin")
    k.e("END_spin:"); k.e("s_endpgm")
    return k
```

```python
import sys, math, struct
from prog import *
from asmlib import K, build, KNAME

def f2u(x): return struct.unpack("<I", struct.pack("<f", x))[0]
LOG2E = math.log2(math.e)
A_OFF = 8 << 20; FL_OFF = 12 << 20; WS_BYTES = 16 << 20
STAMP_OFF = 128 << 20
OOB = 0x40000000
MF = "v_mfma_f32_16x16x32_bf16"
def vr(b, n=4): return f"v[{b}:{b+n-1}]"
def ar(b, n=4): return f"a[{b}:{b+n-1}]"
def srd(n): return f"s[{n}:{n+3}]"
def WAIT(vm=None, regs=None, lg=None): return ("WAIT", vm, regs, lg)

class Cfg:
    AM = 8; stamps = False; aux = "sc1"; name = KNAME + "_kernel"
    gc = 15; pubg = 49; pub7 = 6; pub8 = 50; fl0 = 45; ck0 = 18; fl1 = 53; nh0 = 11; flq = 38; pf = False
    def __init__(self, **kw): self.__dict__.update(kw)

S_WAVE = 3
SRD_X, SRD_W, SRD_D2, SRD_WS, SRD_WD, SRD_O = 28, 32, 36, 40, 44, 48
S_M, S_N, S_T0, S_T1, S_ONES, S_NL2E, S_HB, S_M0B = 52, 53, 54, 55, 56, 57, 58, 59
S_WO, S_HS, S_TT, S_ET, S_WB, S_M0B2, S_HB2, S_WS2 = 60, 61, 62, 63, 64, 65, 66, 67
S_HL, S_E0, S_DIR, S_ANG, S_THR, S_CNT, S_TH2 = 68, 69, 70, 71, 72, 73, 74
S_AB = 76
S_XQ = 80
S_MD, S_PAR, S_D0, S_D1 = 84, 85, 86, 87
S_ST = 88
S_SG, S_B2, S_DS = 96, 97, 98
w = f"s{S_WAVE}"
V_XG, V_WD, V_TR, V_XW, V_XR, V_L16 = 1, 2, 6, 10, 12, 18
V_FLS, V_FLL, V_FV, V_PV, V_XO, V_WD2, V_TR2, V_AF, V_RW, V_RR = 19, 20, 21, 22, 23, 24, 28, 32, 34, 36
T0, T1, T2 = 37, 38, 39
V_FLA, V_FVA = 40, 41
SF = 48
XRAW = 64; ACC = 128; LNB = 192; XF = 224
V_TR2B = V_TR
RING0 = 65536
WD_SLOT = [0, 16384, 32768, 49152, 98304, 114688, 0, 16384, 32768, 49152, 131072, 147456, 98304, 114688]
def wd_reg(ks, cb, n=4, o=0):
    if ks < 4: return vr(XRAW + 16*ks + 4*cb + o, n)
    if ks < 6: return vr(ACC + 32 + 16*(ks-4) + 4*cb + o, n)
    return ar(16*ks + 4*cb + o, n)
A_H = 0; A_AF = 56; ACC2 = 192; RT = 128

class Stamper:
    def __init__(self, cfg): self.on = cfg.stamps; self.regs = [4, 6, 8, 10, 12, 14, 16, 18, 20, 22, 0, 100]
    def first(self, p):
        if self.on: p.e(f"s_memrealtime s[{S_ST}:{S_ST+1}]"); p.e(f"s_memtime s[{S_ST+2}:{S_ST+3}]")
    def ins(self, i):
        return [f"{'s_memtime' if self.on == 3 else 's_memrealtime'} s[{self.regs[i]}:{self.regs[i]+1}]"] if self.on else []
    def stamp(self, p, i): p.add(self.ins(i))
    def write(self, p, label):
        if not self.on: return
        p.e(f"s_memrealtime s[{S_ST+4}:{S_ST+5}]"); p.e(f"s_memtime s[{S_ST+6}:{S_ST+7}]")
        p.e("s_waitcnt lgkmcnt(0)")
        p.e(f"s_lshl_b32 s98, {w}, 8"); p.e("s_add_u32 s98, s98, s2")
        p.e("s_lshl_b32 s98, s98, 7"); p.e(f"s_add_u32 s98, s98, {STAMP_OFF}")
        p.e("v_mov_b32 v1, s98")
        p.e("s_mov_b64 exec, 1")
        for i, r in enumerate([S_ST, S_ST+4, S_ST+2, S_ST+6] + self.regs):
            p.e(f"v_mov_b32 v2, s{r}"); p.e(f"v_mov_b32 v3, s{r+1}")
            p.e(f"global_store_dwordx2 v1, v[2:3], s[26:27] offset:{8*i}"); p.e("s_nop 1")

def mk_srd(d, base, nbytes):
    return [f"s_mov_b32 s{d}, s{base}", f"s_mov_b32 s{d+1}, s{base+1}", f"s_mov_b32 s{d+2}, {nbytes:#x}", f"s_mov_b32 s{d+3}, 0x20000"]

def ln_stats(raw, s1, s2):
    ch = []
    for i in range(8):
        o = [f"v_mov_b32 v{s1}, 0", f"v_mov_b32 v{s2}, 0"] if i == 0 else []
        for d in range(4):
            o.append(f"v_dot2c_f32_bf16 v{s1}, s{S_ONES}, v{raw+4*i+d}")
            o.append(f"v_dot2c_f32_bf16 v{s2}, v{raw+4*i+d}, v{raw+4*i+d}")
        ch.append(o)
    return ch
def ln_reduce(s1, s2, t, scale):
    o = []
    for m in ("quad_perm:[1,0,3,2]", "quad_perm:[2,3,0,1]", "row_half_mirror"):
        o.append(f"v_add_f32_dpp v{s1}, v{s1}, v{s1} {m} row_mask:0xf bank_mask:0xf")
        o.append(f"v_add_f32_dpp v{s2}, v{s2}, v{s2} {m} row_mask:0xf bank_mask:0xf")
    o += [f"v_mul_f32 v{s1}, {f2u(1/512):#x}, v{s1}",
          f"v_mul_f32 v{s2}, {f2u(1/512):#x}, v{s2}",
          f"v_fma_f32 v{s2}, -v{s1}, v{s1}, v{s2}",
          f"v_max_f32 v{s2}, 0, v{s2}",
          f"v_add_f32 v{s2}, {f2u(1e-5):#x}, v{s2}",
          f"v_rsq_f32 v{s2}, v{s2}"]
    if scale: o.append(f"v_mul_f32 v{s2}, s{S_NL2E}, v{s2}")
    o += [f"v_cvt_pk_bf16_f32 v{t}, v{s2}, 0",
          f"v_lshlrev_b32 v{t+1}, 16, v{t}",
          f"v_mul_f32_e64 v{t+2}, -v{s1}, v{t+1}"]
    if not scale:
        o += [f"v_xor_b32 v{t+3}, s{S_SG}, v{t}", f"v_mul_f32 v{t+2}, s{S_B2}, v{t+2}", f"v_lshlrev_b32 v{t+4}, 16, v{t+3}"]
    return o
def ln_apply(raw, t, tmp, outb, vaddr, off0, fold=False):
    segs = []; o = []
    n = 16 if fold else 32; lag = 1 if fold else 2
    def cv(d):
        nonlocal o
        k = tmp + 2*(d % 4); ob = outb + (d % 8)
        o.append(f"v_cvt_pk_bf16_f32 v{ob}, v{k}, v{k+1}")
        if d % 8 == 7:
            i = d // 4
            segs.append((o, [f"ds_write_b128 v{vaddr}, {vr(outb)} offset:{off0 + 2048*(i-1)}", f"ds_write_b128 v{vaddr}, {vr(outb+4)} offset:{off0 + 2048*i}"]))
            o = []
    for d in range(n):
        k = tmp + 2*(d % 4)
        o.append(f"v_dot2_f32_bf16 v{k}, v{raw+d}, v{t}, v{t+2}")
        o.append(f"v_dot2_f32_bf16 v{k+1}, v{raw+d}, v{t+1}, v{t+2}")
        if fold:
            o.append(f"v_dot2_f32_bf16 v{k}, v{raw+16+d}, v{t+3}, v{k}")
            o.append(f"v_dot2_f32_bf16 v{k+1}, v{raw+16+d}, v{t+4}, v{k+1}")
        if d >= lag: cv(d-lag)
    for d in range(n-lag, n): cv(d)
    return segs
def merge(a, b):
    a = flat(a); b = flat(b)
    if not b: return a
    o = []; j = 0
    for i, x in enumerate(a):
        o.append(x)
        while j < len(b) and (j + 1)*len(a) <= (i + 1)*len(b): o.append(b[j]); j += 1
    return o + b[j:]
def popn(q, n):
    o = []
    while q and n > 0:
        o.append(q.pop(0)); n -= 1
    return o
def ln_groups(p, ng, raw, regs, vw, offs, vmq, fold, early, n_st, n_wr):
    S = lambda g: regs + 7*(g & 1); C = lambda g: regs + 7*(g & 1) + 2
    TMP = regs + 14 + (regs & 1); OUT = TMP + 8
    assert OUT % 2 == 0
    st = [ln_stats(raw + 32*g, S(g), S(g)+1) for g in range(ng)]
    for c in st[0]:
        p.add(c); p.add(popn(vmq, n_st))
    for g in range(ng):
        nx = st[g+1] if g + 1 < ng else []
        if g == 0:
            r = ln_reduce(S(0), S(0)+1, C(0), not fold)
            p.add(merge(r, popn(nx, 2)) if early else r)
        segs = ln_apply(raw + 32*g, C(g), TMP, OUT, vw, offs[g], fold)
        ns = len(segs)
        for k, (ops, wr) in enumerate(segs):
            if g + 1 < ng:
                if k < ns - 1:
                    left = ns - 1 - k
                    ops = merge(ops, popn(nx, len(nx) // left if left > 1 else 8))
                else:
                    ops = merge(ops, ln_reduce(S(g+1), S(g+1)+1, C(g+1), not fold))
            p.add(ops); p.add(wr); p.add(popn(vmq, n_wr))

def xn_addr_regs(v_w, v_r0, v_r1, tA, tB):
    return [f"v_lshrrev_b32 v{tA}, 3, v0", f"v_and_b32 v{tB}, 7, v0", f"v_xor_b32 v{v_w}, v{tA}, v{tB}", f"v_lshlrev_b32 v{v_w}, 4, v{v_w}",
            f"v_lshl_add_u32 v{v_w}, v{tB}, 8, v{v_w}", f"v_lshrrev_b32 v{tA}, 4, v0", f"v_and_b32 v{tB}, 15, v0", f"v_xor_b32 v{tB}, v{tA}, v{tB}",
            f"v_lshlrev_b32 v{tB}, 4, v{tB}", f"v_lshl_add_u32 v{v_r0}, v{tA}, 8, v{tB}", f"v_xor_b32 v{v_r1}, 64, v{v_r0}"]

def p2_scalar():
    o = [f"s_and_b32 s{S_T0}, s2, 7", f"s_lshl_b32 s{S_TT}, s{S_T0}, 2", f"s_bfe_u32 s{S_T0}, s2, {3 | 2 << 16:#x}",
         f"s_add_u32 s{S_TT}, s{S_TT}, s{S_T0}", f"s_lshr_b32 s{S_ET}, s2, 5",
         f"s_lshl_b32 s{S_T0}, {w}, 15", f"s_lshl_b32 s{S_T1}, s{S_ET}, 7", f"s_add_u32 s{S_WB}, s{S_T0}, s{S_T1}",
         f"s_lshl_b32 s{S_M0B2}, {w}, 12",
         f"s_lshl_b32 s{S_T0}, s{S_TT}, 4", f"s_add_u32 s{S_T0}, s{S_T0}, {w}", f"s_mul_i32 s{S_HB2}, s{S_T0}, 14336",
         f"s_and_b32 s{S_THR}, s{S_TT}, 1", f"s_add_u32 s{S_THR}, s{S_THR}, 3", f"s_lshl_b32 s{S_THR}, s{S_THR}, 7"]
    o += mk_srd(SRD_WS, 26, WS_BYTES) + mk_srd(SRD_WD, 20, 1792*1024) + mk_srd(SRD_O, 22, 2048*1024)
    o += [f"s_sub_u32 s{S_T0}, 32, s{S_TT}", f"s_and_b32 s{S_T0}, s{S_T0}, 31",
          f"s_lshl_b32 s{S_E0}, s{S_ET}, 6", f"s_sub_u32 s{S_DIR}, 511, s{S_E0}", f"s_sub_u32 s{S_E0}, s{S_E0}, 1",
          f"s_cmp_ge_u32 s{S_ET}, 4",
          f"s_cselect_b32 s{S_T0}, s{S_T0}, s{S_TT}", f"s_cselect_b32 s{S_E0}, s{S_DIR}, s{S_E0}", f"s_cselect_b32 s{S_DIR}, -1, 1",
          f"s_cselect_b32 s{S_ANG}, 0, 0x80000000",
          f"s_xor_b32 s{S_ANG}, s{S_ANG}, {f2u(1/2048):#x}",
          f"s_lshl_b32 s{S_T0}, s{S_T0}, 16", f"s_lshl_b32 s{S_T1}, {w}, 14", f"s_add_u32 s{S_T0}, s{S_T0}, s{S_T1}",
          f"s_add_u32 s{S_AB}, s{S_T0}, {A_OFF}", f"s_mov_b32 s{S_AB+1}, s{S_AB}",
          f"s_lshl_b32 s{S_T1}, s{S_DIR}, 7", f"s_add_u32 s{S_AB+2}, s{S_AB+1}, s{S_T1}", f"s_add_u32 s{S_AB+3}, s{S_AB+2}, s{S_T1}"]
    o += [f"s_lshl_b32 s{S_T0}, {w}, 17", f"s_lshl_b32 s{S_T1}, s{S_TT}, 10", f"s_add_u32 s{S_T0}, s{S_T0}, s{S_T1}",
          f"s_lshl_b32 s{S_T1}, s{S_ET}, 7", f"s_add_u32 s{S_XQ}, s{S_T0}, s{S_T1}"]
    o += [f"s_add_u32 s{S_XQ+q}, s{S_XQ}, {q*524288}" for q in range(1, 4)]
    o += [f"s_lshr_b32 s{S_T0}, s{S_TT}, 1", f"s_lshl_b32 s{S_T0}, s{S_T0}, 2", f"s_add_u32 s{S_T0}, s{S_T0}, {w}", f"s_mul_i32 s{S_T0}, s{S_T0}, 640",
          f"s_add_u32 s{S_HL}, s{S_T0}, {FL_OFF}", f"s_lshl_b32 s{S_T0}, {w}, 9", f"s_add_u32 s{S_TH2}, s{S_T0}, {FL_OFF + 320*128}"]
    return o
def p2_vector(G):
    o = [f"v_lshrrev_b32 v{T0}, 3, v0", f"v_and_b32 v{T1}, 7, v0", f"v_and_b32 v{T2}, 6, v{T0}", f"v_xor_b32 v{T1}, v{T1}, v{T2}",
         f"v_lshlrev_b32 v{T1}, 4, v{T1}", f"v_lshl_add_u32 v{V_WD2}, v{T0}, 10, v{T1}"]
    o += [f"v_add_u32 v{V_WD2+a}, {a*(8192-1024)}, v{V_WD2}" for a in range(1, 4)]
    o += [f"v_lshrrev_b32 v{T1}, 2, v0", f"v_lshlrev_b32 v{V_TR2}, 7, v{T1}", f"v_bfe_u32 v{T1}, v0, 3, 2", f"v_lshl_add_u32 v{V_TR2}, v{T1}, 5, v{V_TR2}",
          f"v_and_b32 v{T1}, 3, v0", f"v_lshl_add_u32 v{V_TR2}, v{T1}, 3, v{V_TR2}", f"v_add_u32 v{V_TR2}, s{S_M0B2}, v{V_TR2}"]
    o += [f"v_xor_b32 v{V_TR2+cb}, {32*cb}, v{V_TR2}" for cb in range(1, 4)]
    o += [f"v_mov_b32 v{V_FLL}, s{S_HL}", f"v_and_b32 v{T0}, 15, v0", f"v_lshlrev_b32 v{V_L16}, 4, v0"]
    o += [f"v_lshrrev_b32 v{T2}, 4, v0", f"v_lshl_add_u32 v{V_FLA}, v{T2}, 7, s{S_TH2}"]
    for cb in range(2):
        o += [f"v_add_u32 v{T1}, {16*cb}, v{T0}", f"v_mul_i32_i24 v{T1}, s{S_DIR}, v{T1}", f"v_add_u32 v{T1}, s{S_E0}, v{T1}",
              f"v_and_b32 v{V_AF+cb}, 1, v{T1}", f"v_lshlrev_b32 v{V_AF+cb}, 11, v{V_AF+cb}", f"v_lshl_add_u32 v{V_AF+cb}, v{T2}, 12, v{V_AF+cb}",
              f"v_bfe_u32 v{T1}, v{T1}, 1, 26", f"v_lshl_add_u32 v{V_AF+cb}, v{T1}, 4, v{V_AF+cb}"]
    o += [f"v_lshlrev_b32 v{T1}, 3, v{T0}", f"v_lshl_add_u32 v{V_XO}, v{T2}, 15, v{T1}"]
    o += [f"v_and_b32 v{T1}, 7, v0", f"v_xor_b32 v{T1}, v{T1}, v{T2}", f"v_lshlrev_b32 v{T1}, 4, v{T1}", f"v_lshl_add_u32 v{T1}, v{T0}, 8, v{T1}",
          f"v_add_u32 v{V_RW}, s{S_M0B2}, v{T1}", f"v_xor_b32 v{V_RW+1}, 64, v{V_RW}",
          f"v_lshl_add_u32 v{T1}, {w}, 2, v{T2}", f"v_and_b32 v{V_RR}, 7, v{T1}", f"v_xor_b32 v{V_RR}, v{V_RR}, v{T0}",
          f"v_lshlrev_b32 v{V_RR}, 4, v{V_RR}", f"v_lshl_add_u32 v{V_RR}, v{T1}, 8, v{V_RR}"]
    o += [f"v_lshl_add_u32 v{T0}, v{T0}, 5, s{S_TT}", f"v_cvt_f32_u32 v{T0}, v{T0}", f"v_lshlrev_b32 v{T1}, 2, v{T1}", f"v_cvt_f32_u32 v{T2}, v{T1}"]
    for b in range(4): o += [f"v_add_f32 v{G+b}, {f2u(float(b)):#x}, v{T2}", f"v_mul_f32 v{G+b}, s{S_ANG}, v{G+b}"]
    for q in range(4):
        g = G + 4 + 12*(q & 1)
        if q: o.append(f"v_add_f32 v{T0}, {f2u(512.0):#x}, v{T0}")
        o += [f"v_mul_f32 v{g+b}, v{T0}, v{G+b}" for b in range(4)]
        o += [f"v_fract_f32 v{g+b}, v{g+b}" for b in range(4)]
        for b in range(4): o += [f"v_cos_f32 v{g+4+b}, v{g+b}", f"v_sin_f32 v{g+8+b}, v{g+b}"]
        o += [f"v_cvt_pk_bf16_f32 v{SF+4*q+b}, v{g+4+b}, v{g+8+b}" for b in range(4)]
    return o
def tr2b(): return [f"v_add_u32 v{V_TR2B+cb}, 98304, v{V_TR2+cb}" for cb in range(4)]
def wd_dma(ks):
    o = [[f"s_add_u32 m0, s{S_M0B2}, {WD_SLOT[ks]}", f"s_add_u32 s{S_WS2}, s{S_WB}, {ks*131072}"], [], [], []]
    for a in range(4): o[a].append(Ins(f"buffer_load_dwordx4 v{V_WD2+a}, {srd(SRD_WD)}, s{S_WS2} offen offset:{1024*a} lds", f"wd{ks}"))
    return o
def wd_tr(ks):
    s = WD_SLOT[ks]; base, off = (V_TR2, s) if s < 65536 else (V_TR2B, s - 98304)
    return [Ins(f"ds_read_b64_tr_b16 {wd_reg(ks, cb, 2, 2*pp)}, v{base+cb} offset:{off + pp*2048}", f"wt{ks}") for cb in range(4) for pp in range(2)]
def h_load(cfg, q, n):
    o = [f"s_add_u32 s{S_HL}, s{S_HB2}, {q*57344 + n*1024}"] if n % 4 == 0 else []
    return o + [f"buffer_load_dwordx4 {ar(A_H + 4*n)}, v{V_L16}, {srd(SRD_WS)}, s{S_HL} offen offset:{1024*(n % 4)} {cfg.aux}"]
def a_loads(cfg):
    return [f"buffer_load_dwordx4 {ar(A_AF+4*cb)}, v{V_AF + min(cb, 1)}, {srd(SRD_WS)}, s{S_AB+cb} offen {cfg.aux}" for cb in range(4)]
def flag_load(q):
    return f"buffer_load_dword v{V_FV}, v{V_FLL}, {srd(SRD_WS)}, " + (f"0 offen offset:{128*q} sc1" if q < 3 else f"s{S_THR} offen sc1")
def aflag_load(): return f"buffer_load_dword v{V_FVA}, v{V_FLA}, {srd(SRD_WS)}, 0 offen sc1"
def dbg_load(): return f"global_load_dword v{V_FV}, v{V_FVA}, s[24:25] sc1"
SLOW = []
SLEEP = [4]
def check(tag, thr, load, reg=V_FV):
    SLOW.append(f"""SL_{tag}:
        s_mov_b32 s{S_CNT}, 0
        SLL_{tag}:
        {load}
        s_waitcnt vmcnt(0)
        v_cmp_gt_u32 vcc, {thr}, v{reg}
        s_cbranch_vccz BK_{tag}
        s_sleep {SLEEP[0]}
        s_add_u32 s{S_CNT}, s{S_CNT}, 1
        s_cmp_lt_u32 s{S_CNT}, 0x8000
        s_cbranch_scc1 SLL_{tag}
        s_branch BK_{tag}""")
    return [WAIT(regs=f"v{reg}"), f"v_cmp_gt_u32 vcc, {thr}, v{reg}", f"s_cbranch_vccnz SL_{tag}", f"BK_{tag}:"]
def check_q(tag, q): return check(tag, 14, flag_load(q))
def check_a(tag): return check(tag, 8, aflag_load(), V_FVA)
def publish(r, tags):
    return [WAIT(vm=tags), f"buffer_atomic_add v{V_PV}, v{V_FLS}, {srd(SRD_WS)}, 0 offen offset:{128*r} sc1"]

def glu_path(p, cfg, st):
    p.e(f"v_lshrrev_b32 v{T0}, 3, v0"); p.e(f"v_and_b32 v{T1}, 7, v0")
    p.e(f"v_lshlrev_b32 v{T1}, 4, v{T1}"); p.e(f"v_lshl_add_u32 v{V_XG}, v{T0}, 15, v{T1}")
    p.e(f"s_and_b32 s{S_T0}, {w}, 1"); p.e(f"s_lshl_b32 s{S_T1}, s{S_M}, 1"); p.e(f"s_add_u32 s{S_T0}, s{S_T0}, s{S_T1}")
    p.e(f"s_lshl_b32 s{S_T0}, s{S_T0}, 10"); p.e(f"s_lshr_b32 s{S_T1}, {w}, 1"); p.e(f"s_lshl_b32 s{S_T1}, s{S_T1}, 19")
    p.e(f"s_add_u32 s{S_D0}, s{S_T0}, s{S_T1}"); p.e(f"s_add_u32 s{S_D1}, s{S_D0}, {8*32768}")
    p.e("s_waitcnt lgkmcnt(0)")
    p.add(mk_srd(SRD_X, 4, 2048*1024))
    def xloads(gi):
        return [f"buffer_load_dwordx4 {vr(XRAW + 32*gi + 4*i)}, v{V_XG}, {srd(SRD_X)}, s{S_D0+gi} offen offset:{128*i}" for i in range(8)]
    vmq = xloads(0) + xloads(1)
    p.add(popn(vmq, 10))
    p.e(f"s_cmp_ge_u32 {w}, 2")
    p.e(f"s_cselect_b32 s{SRD_W}, s18, s16"); p.e(f"s_cselect_b32 s{SRD_W+1}, s19, s17")
    p.e(f"s_mov_b32 s{SRD_W+2}, {512*3584:#x}"); p.e(f"s_mov_b32 s{SRD_W+3}, 0x20000")
    p.e(f"v_lshrrev_b32 v{T0}, 4, v0"); p.e(f"v_and_b32 v{T1}, 15, v0")
    p.e(f"v_lshlrev_b32 v{T2}, 1, v{T0}"); p.e(f"v_xor_b32 v{T1}, v{T2}, v{T1}"); p.e(f"v_lshlrev_b32 v{T1}, 4, v{T1}")
    p.e(f"v_mul_u32_u24 v{T0}, 3584, v{T0}")
    p.e(f"v_add_u32 v{V_WD}, v{T0}, v{T1}"); p.e(f"v_add_u32 v{V_WD+1}, {4*3584-1024}, v{V_WD}")
    p.e(f"v_xor_b32 v{T1}, 128, v{T1}"); p.e(f"v_add_u32 v{T0}, v{T0}, v{T1}")
    p.e(f"v_add_u32 v{V_WD+2}, {2*(4*3584-1024)}, v{T0}"); p.e(f"v_add_u32 v{V_WD+3}, {3*(4*3584-1024)}, v{T0}")
    p.e(f"s_and_b32 s{S_T0}, {w}, 1"); p.e(f"s_mul_i32 s{S_T0}, s{S_T0}, {16*3584}")
    p.e(f"s_lshl_b32 s{S_T1}, s{S_N}, 8"); p.e(f"s_add_u32 s{S_DS}, s{S_T0}, s{S_T1}")
    p.e(f"s_lshl_b32 s{S_M0B}, {w}, 12"); p.e(f"s_add_u32 s{S_M0B}, s{S_M0B}, {RING0}")
    def wdma(s):
        o = [[f"s_add_u32 m0, s{S_M0B}, {(s % 6)*16384}", f"s_add_u32 s{S_WO}, s{S_DS}, {s*32*3584}"], [], [], []]
        for a in range(4): o[a].append(Ins(f"buffer_load_dwordx4 v{V_WD+a}, {srd(SRD_W)}, s{S_WO} offen offset:{1024*a} lds", f"w{s}"))
        return o
    for s in range(6): vmq += wdma(s)
    p.e(f"s_mov_b32 s{S_ONES}, 0x3f803f80"); p.e(f"s_mov_b32 s{S_NL2E}, {f2u(-LOG2E):#x}")
    p.add(xn_addr_regs(V_XW, V_XR, V_XR+1, T0, T1))
    p.e(f"s_add_u32 s{S_T0}, {w}, 4"); p.e(f"s_cmp_ge_u32 s{S_T0}, 6"); p.e(f"s_cselect_b32 s{S_T1}, 6, 0"); p.e(f"s_sub_u32 s{S_T0}, s{S_T0}, s{S_T1}")
    p.e(f"s_lshl_b32 s{S_T0}, s{S_T0}, 14"); p.e(f"s_add_u32 s{S_T0}, s{S_T0}, {RING0}")
    p.e(f"v_add_u32 v{V_XW+1}, s{S_T0}, v{V_XW}")
    p.e(f"s_lshl_b32 s{S_T0}, {w}, 14"); p.e(f"v_add_u32 v{V_XW}, s{S_T0}, v{V_XW}")
    for h in (1, 2):
        p.e(f"v_add_u32 v{V_XR+2*h}, {65536*h}, v{V_XR}"); p.e(f"v_add_u32 v{V_XR+2*h+1}, {65536*h}, v{V_XR+1}")
    p.e(f"v_lshrrev_b32 v{T0}, 2, v0"); p.e(f"v_and_b32 v{T0}, 7, v{T0}")
    p.e(f"s_lshl_b32 s{S_T0}, {w}, 1"); p.e(f"v_xor_b32 v{T0}, s{S_T0}, v{T0}"); p.e(f"v_lshlrev_b32 v{T0}, 5, v{T0}")
    p.e(f"v_and_b32 v{T1}, 3, v0"); p.e(f"v_lshl_add_u32 v{T0}, v{T1}, 3, v{T0}")
    p.e(f"v_bfe_u32 v{T1}, v0, 2, 2"); p.e(f"v_lshl_add_u32 v{T0}, v{T1}, 8, v{T0}")
    p.e(f"v_lshrrev_b32 v{T1}, 4, v0"); p.e(f"v_lshl_add_u32 v{T0}, v{T1}, 11, v{T0}")
    p.e(f"v_add_u32 v{V_TR}, {RING0}, v{T0}"); p.e(f"v_xor_b32 v{V_TR+1}, 32, v{V_TR}")
    p.e(f"v_add_u32 v{V_TR+2}, 65536, v{V_TR}"); p.e(f"v_add_u32 v{V_TR+3}, 65536, v{V_TR+1}")
    p.e(f"s_lshl_b32 s{S_T0}, s{S_M}, 5"); p.e(f"s_add_u32 s{S_T0}, s{S_T0}, {w}"); p.e(f"s_mul_i32 s{S_T0}, s{S_T0}, 14")
    p.e(f"s_add_u32 s{S_T0}, s{S_T0}, s{S_N}"); p.e(f"s_lshl_b32 s{S_HB}, s{S_T0}, 10")
    p.e(f"s_lshl_b32 s{S_T0}, s{S_M}, 2"); p.e(f"s_add_u32 s{S_T0}, s{S_T0}, {w}"); p.e(f"s_mul_i32 s{S_T0}, s{S_T0}, 640")
    p.e(f"s_add_u32 s{S_T0}, s{S_T0}, {FL_OFF}")
    p.e(f"v_lshl_add_u32 v{V_FLS}, v0, 24, s{S_T0}"); p.e(f"v_mov_b32 v{V_PV}, 1"); p.e(f"v_mov_b32 v{V_FVA}, 0")
    p.add(p2_scalar())
    st.stamp(p, 0)
    def trread(j, cb, pp):
        sl = j % 6; base = V_TR + (2 if sl >= 4 else 0) + (cb & 1)
        off = (sl % 4)*16384 + (cb >> 1)*8192 + pp*1024
        return Ins(f"ds_read_b64_tr_b16 {ar(16*j + 4*cb + 2*pp, 2)}, v{base} offset:{off}", f"tr{j}")
    def xread(rho, j, slot):
        if rho < 4: base, off = V_XR, rho*16384
        else:
            sl = rho % 6
            base, off = (V_XR + 4, (sl - 4)*16384) if sl >= 4 else (V_XR + 2, sl*16384)
        return Ins(f"ds_read_b128 {vr(XF + 4*slot)}, v{base + (j & 1)} offset:{off + 1024*j}")
    p.mark("ln01")
    ln_groups(p, 2, XRAW, LNB, V_XW, [0, 128], vmq, False, False, 1, 3)
    assert not vmq
    st.stamp(p, 1)
    p.wait(vm=["w1"], lg="all"); p.e("s_barrier")
    for cb in range(4):
        for pp in range(2): p.add(trread(0, cb, pp))
    for rho in range(4): p.add(xread(rho, 0, rho))
    p.e(f"s_add_u32 s{S_D0}, s{S_D0}, {32*32768}"); p.e(f"s_add_u32 s{S_D1}, s{S_D1}, {32*32768}")
    p.wait(lg=["tr0"], regs=vr(XF)); p.e("s_barrier")
    p.mark("pass1")
    st.stamp(p, 2)
    for s in range(6, 16): vmq += wdma(s)
    vmq += xloads(0) + xloads(1)
    qv = Q(p2_vector(LNB), ooo=True)
    issued = 0
    for j in range(16):
        cur = 4*(j & 1); nxt = 4 - cur
        mf = []
        for rho in range(4):
            for cb in range(4):
                a = ACC + 16*rho + 4*cb
                mf.append(f"{MF} {vr(a)}, {ar(16*j+4*cb)}, {vr(XF + 4*(cur+rho))}, {vr(a) if j else 0}")
        pin = {g: [] for g in range(16)}
        for rho in range(1, 4): pin[4*rho-1].append(WAIT(regs=vr(XF + 4*(cur+rho))))
        nv = 4 if j % 2 == 0 else 3
        vm = popn(vmq, nv); issued += nv
        assert issued <= 4*(j+1)
        if j + 1 < 16:
            for g, gp in enumerate([0, 0, 2, 2, 4, 4, 6, 6]): pin[gp].append(trread(j+1, g >> 1, g & 1))
            pin[8] += [xread(0, j+1, nxt), xread(1, j+1, nxt+1)]; pin[12] += [xread(2, j+1, nxt+2), xread(3, j+1, nxt+3)]
        for a, grp in enumerate(vm):
            grp = flat([grp]); g = [1, 5, 9, 13][a] if nv == 4 else [1, 7, 13][a]
            pin[g] += grp
        if j + 2 < 16: pin[15] += [WAIT([f"w{j+2}"], vr(XF + 4*nxt), [f"tr{j+1}"]), "s_barrier"]
        elif j + 1 < 16: pin[15] += [WAIT(None, vr(XF + 4*nxt), [f"tr{j+1}"])]
        else: pin[12] += ["s_barrier"]; pin[14] += [qv]
        weave2(p, mf, pin, [qv])
    assert not vmq
    p.mark("ln23")
    st.stamp(p, 3)
    vmq = [dbg_load()]
    for ks in range(6): vmq += wd_dma(ks)
    ln_groups(p, 2, XRAW, LNB, V_XW+1, [0, 128], vmq, False, True, 0, 3)
    p.add(vmq); vmq = []
    p.add(tr2b())
    p.add(check("clr", 32, dbg_load()))
    p.wait(lg="all"); p.e("s_barrier")
    st.stamp(p, 4)
    accs = {0: ACC, 1: ACC+16, 2: ACC+32, 3: ACC+48, 4: 192, 5: 208, 6: ACC, 7: ACC+16}
    def epi(rho):
        a = accs[rho]; o = []
        for i in range(8): o.append(f"v_exp_f32 v{a+i}, v{a+i}")
        for i in range(8): o.append(f"v_fma_f32 v{a+i}, v{a+i}, s{S_NL2E}, s{S_NL2E}")
        for i in range(8): o.append(f"v_rcp_f32 v{a+i}, v{a+i}")
        for i in range(8): o.append(f"v_mul_f32 v{a+8+i}, v{a+8+i}, v{a+i}")
        for i in range(4): o.append(f"v_cvt_pk_bf16_f32 v{a+i}, v{a+8+2*i}, v{a+9+2*i}")
        o.append(f"s_add_u32 s{S_HS}, s{S_HB}, {(rho & 1)*229376 + (rho >> 1)*57344}")
        o.append(Ins(f"buffer_store_dwordx4 {vr(a)}, v{V_L16}, {srd(SRD_WS)}, s{S_HS} offen {cfg.aux}", f"h{rho}"))
        return o
    PF = 4
    seq = [(rho, j) for rho in range(4, 8) for j in range(16)]
    for i in range(PF): p.add(xread(seq[i][0], seq[i][1], i % 8))
    def stash(ks, nk): return [WAIT(vm=[f"wd{ks}"])] + wd_tr(ks), [WAIT(lg=[f"wt{ks}"])] + wd_dma(nk)
    for rho in range(4, 8):
        p.mark(f"pass{rho}")
        qe = Q({4: epi(0) + epi(1), 5: epi(2) + epi(3), 6: epi(4) + epi(5), 7: epi(6)}[rho], ooo=True, start=(0 if rho < 6 else 3))
        mf = []; pin = {g: [] for g in range(64)}
        for j in range(16):
            i = (rho - 4)*16 + j
            for cb in range(4):
                a = accs[rho] + 4*cb
                mf.append(f"{MF} {vr(a)}, {ar(16*j+4*cb)}, {vr(XF + 4*(i % 8))}, {vr(a) if j else 0}")
            if i + PF < 64: pin[4*j].append(xread(seq[i+PF][0], seq[i+PF][1], (i+PF) % 8))
            if i + 1 < 64: pin[4*j+3].append(WAIT(regs=vr(XF + 4*((i+1) % 8))))
        if rho in (4, 5):
            k0 = 2*(rho - 4)
            a0, b0 = stash(k0, k0 + 6); a1, b1 = stash(k0 + 1, k0 + 7)
            qm = Q(a0 + a1 + b0 + b1, every=5)
        elif rho == 6:
            a0, b0 = stash(4, 12); a1, b1 = stash(5, 13)
            qm = Q(wd_dma(10) + a0 + a1 + wd_dma(11) + b0 + b1, every=3)
            pin[cfg.fl0].append(flag_load(0))
        else:
            pin[cfg.ck0] += check_q("q0", 0)
            qm = Q([h_load(cfg, 0, n) for n in range(cfg.nh0)], every=4, start=cfg.ck0 + 1)
        if rho >= 5: pin[cfg.pubg] += publish(rho - 5, [f"h{2*(rho-4)-1}"])
        if rho == 5: pin[61] = ["s_barrier"] + pin[61]
        if rho == 7: pin[cfg.fl1] += [flag_load(1), aflag_load()]
        weave2(p, mf, pin, [qm, qe])
        qm.flush(p); qe.flush(p)
        st.stamp(p, 1 + rho)
    p.mark("tail")
    p.add(epi(7))

def phase2(p, cfg, st):
    def mfs(q, n):
        a0 = ACC2 + 16*(q & 1)
        if n == 14: return [f"{MF} {vr(a0+4*cb)}, {ar(A_AF+4*cb)}, {vr(SF+4*q)}, {vr(a0+4*cb)}" for cb in range(4)]
        return [f"{MF} {vr(a0+4*cb)}, {wd_reg(n, cb)}, {ar(A_H + 4*n)}, {vr(a0+4*cb) if n else 0}" for cb in range(4)]
    XR = RT + 24
    def red(q):
        a0 = ACC2 + 16*(q & 1); bo = (q & 1)*16384; o = []; xr = XR + 2*(q & 1)
        for cb in range(4): o.append(f"ds_write_b128 v{V_RW + (cb & 1)}, {vr(a0+4*cb)} offset:{bo + 128*(cb >> 1)}")
        o += [f"v_lshlrev_b32 v{RT+16}, 16, v{xr}", f"v_and_b32 v{RT+17}, 0xffff0000, v{xr}",
              f"v_lshlrev_b32 v{RT+18}, 16, v{xr+1}", f"v_and_b32 v{RT+19}, 0xffff0000, v{xr+1}"]
        o1 = [WAIT(lg="all"), "s_barrier"]
        for pw in range(4): o1.append(f"ds_read_b128 {vr(RT+4*pw)}, v{V_RR} offset:{bo + 4096*pw}")
        o2 = []
        for pw in range(4):
            for i in range(4): o2.append(f"v_add_f32 v{RT+16+i}, v{RT+16+i}, v{RT+4*pw+i}")
        o2 += [f"v_cvt_pk_bf16_f32 v{RT+20}, v{RT+16}, v{RT+17}", f"v_cvt_pk_bf16_f32 v{RT+21}, v{RT+18}, v{RT+19}",
               f"buffer_store_dwordx2 {vr(RT+20, 2)}, v{V_XO}, {srd(SRD_O)}, s{S_XQ+q} offen"]
        return o, o1, o2
    gc = cfg.gc
    for q in range(4):
        p.mark(f"q{q}")
        mf = []; pin = {g: [] for g in range(60)}
        for n in range(15):
            mf += mfs(q, n)
            if n < 14: pin[4*n + 3].append(WAIT(regs=(ar(A_H + 4*(n+1)) + " " + wd_reg(n+1, 0, 16)) if n < 13 else ar(A_AF, 16)))
        if q < 3:
            pin[59].append(WAIT(regs=ar(A_H)))
            pin[gc] += check_q(f"q{q+1}", q+1)
        for n in range(14):
            g = gc + 2 + 4*n
            if g < 60 and q < 3: assert g > 4*n + 3; pin[g] += h_load(cfg, q+1, n)
            if g >= 60 and (q > 0 or n >= cfg.nh0): pin[g - 60] += h_load(cfg, q, n)
            assert g >= 60 or n < cfg.nh0
        if q < 2: pin[cfg.flq].append(flag_load(q+2))
        pin[10].append(f"buffer_load_dwordx2 {vr(XR + 2*(q & 1), 2)}, v{V_XO}, {srd(SRD_X)}, s{S_XQ+q} offen")
        qs = []
        if q == 0:
            for ks in range(6, 14):
                qs.append(Q([WAIT(vm=[f"wd{ks}"])] + wd_tr(ks), start=4*(ks-6)))
                pin[4*ks - 6].append(qs[-1])
            pin[cfg.pub7] += publish(3, ["h6"]); pin[cfg.pub8] += publish(4, ["h7"])
            pin[gc - 1] += check_a("a")
            for cb, x in enumerate(a_loads(cfg)): pin[gc + 1 + 2*cb].append(x)
        else:
            r0, r1, r2 = red(q-1)
            qs = [Q(r0, start=4), Q(r1, start=22), Q(r2, start=36)]
            pin[21].append(qs[0]); pin[35].append(qs[1])
        weave2(p, mf, pin, qs)
        for x in qs: x.flush(p)
        if q in (0, 2, 3): st.stamp(p, {0: 9, 2: 10, 3: 11}[q])
    p.mark("tail2")
    p.add(list(red(3)))

def dft_path(p, cfg, st):
    V_DD, V_DR, V_XWd, V_XRd, V_ST = 2, 6, 8, 10, 12
    t0, t1, t2 = 14, 15, 16
    LN = 18
    XRW = 128; AC = 128; XFd = 52; DF = 84; CF = 0
    p.e(f"s_lshr_b32 s{S_MD}, s{S_M}, 1"); p.e(f"s_and_b32 s{S_T0}, s{S_M}, 1"); p.e(f"s_lshl_b32 s{S_T0}, s{S_T0}, 3")
    p.e(f"s_add_u32 s{S_MD}, s{S_MD}, s{S_T0}"); p.e(f"s_sub_u32 s{S_PAR}, s{S_N}, 14")
    p.e(f"v_lshrrev_b32 v{t0}, 3, v0"); p.e(f"v_and_b32 v{t1}, 7, v0")
    p.e(f"v_lshlrev_b32 v{t2}, 4, v{t1}"); p.e(f"v_lshl_add_u32 v{V_XG}, v{t0}, 16, v{t2}")
    p.e(f"s_lshl_b32 s{S_T0}, s{S_MD}, 2"); p.e(f"s_add_u32 s{S_T0}, s{S_T0}, {w}"); p.e(f"s_lshl_b32 s{S_D0}, s{S_T0}, 10")
    p.e(f"s_lshl_b32 s{S_HS}, s{S_MD}, 1"); p.e(f"s_add_u32 s{S_HS}, s{S_HS}, s{S_PAR}"); p.e(f"s_lshl_b32 s{S_HS}, s{S_HS}, 11")
    p.e(f"s_add_u32 s{S_HS}, s{S_HS}, {FL_OFF}")
    p.e("s_waitcnt lgkmcnt(0)")
    p.add(mk_srd(SRD_X, 4, 2048*1024))
    p.add(mk_srd(SRD_WS, 26, WS_BYTES))
    p.e(f"s_cmp_lg_u32 {w}, 0"); p.e("s_cbranch_scc1 NOCLR")
    p.raw("\n".join([f"v_mov_b32 v{20+i}, 0" for i in range(4)] + [f"v_lshlrev_b32 v24, 4, v0"]))
    for i in range(2): p.raw(f"buffer_store_dwordx4 v[20:23], v24, {srd(SRD_WS)}, s{S_HS} offen offset:{1024*i} sc1")
    p.e("NOCLR:")
    vmq = []
    for gi in range(4):
        for i in range(8):
            vmq.append(([f"s_add_u32 s{S_D0}, s{S_D0}, {8*65536}"] if gi and not i else []) +
                       [f"buffer_load_dwordx4 {vr(XRW + 32*gi + 4*i)}, v{V_XG}, {srd(SRD_X)}, s{S_D0} offen offset:{128*i}"])
    p.add(popn(vmq, 10))
    p.add(mk_srd(SRD_W, 10, 512*1024) + mk_srd(SRD_D2, 12, 512*1024))
    p.e(f"v_lshrrev_b32 v{t2}, 1, v{t0}"); p.e(f"v_xor_b32 v{t1}, v{t2}, v{t1}"); p.e(f"v_lshlrev_b32 v{t1}, 4, v{t1}")
    p.e(f"v_lshl_add_u32 v{V_DD}, v{t0}, 11, v{t1}")
    p.e(f"v_xor_b32 v{t2}, 64, v{V_DD}")
    p.e(f"v_add_u32 v{V_DD+1}, {16384-1024}, v{t2}"); p.e(f"v_add_u32 v{V_DD+2}, {2*(16384-1024)}, v{V_DD}"); p.e(f"v_add_u32 v{V_DD+3}, {3*(16384-1024)}, v{t2}")
    p.e(f"s_lshl_b32 s{S_T0}, {w}, 6"); p.e(f"s_add_u32 s{S_T0}, s{S_T0}, s{S_PAR}"); p.e(f"s_add_u32 s{S_T0}, s{S_T0}, 1")
    p.e(f"s_lshl_b32 s{S_D1}, s{S_T0}, 10")
    p.e(f"s_mul_i32 s{S_M0B}, {w}, 24576"); p.e(f"s_add_u32 s{S_M0B}, s{S_M0B}, {RING0}")
    def ddma(kc):
        o = []
        for mat in range(2):
            for a in range(4):
                g = [f"s_add_u32 m0, s{S_M0B}, {(kc % 3)*8192 + mat*4096}", f"s_add_u32 s{S_DS}, s{S_D1}, {128*kc}"] if a == 0 else []
                o.append(g + [Ins(f"buffer_load_dwordx4 v{V_DD+a}, {srd(SRD_D2 if mat else SRD_W)}, s{S_DS} offen offset:{1024*a} lds", f"d{kc}")])
        return o
    for kc in range(3): vmq += ddma(kc)
    p.e(f"s_mov_b32 s{S_ONES}, 0x3f803f80")
    p.add(xn_addr_regs(V_XWd, V_XRd, V_XRd+1, t0, t1))
    p.e(f"s_lshl_b32 s{S_T0}, {w}, 14"); p.e(f"v_add_u32 v{V_XWd}, s{S_T0}, v{V_XWd}")
    p.e(f"v_and_b32 v{t0}, 15, v0"); p.e(f"v_lshrrev_b32 v{t1}, 1, v{t0}"); p.e(f"v_lshrrev_b32 v{t2}, 4, v0")
    p.e(f"v_xor_b32 v{t1}, v{t1}, v{t2}"); p.e(f"v_lshlrev_b32 v{t1}, 4, v{t1}"); p.e(f"v_lshl_add_u32 v{t1}, v{t0}, 7, v{t1}")
    p.e(f"v_add_u32 v{V_DR}, s{S_M0B}, v{t1}"); p.e(f"v_xor_b32 v{V_DR+1}, 64, v{V_DR}")
    p.e(f"v_lshlrev_b32 v{t0}, 4, v{t0}"); p.e(f"v_lshl_add_u32 v{V_ST}, v{t2}, 18, v{t0}")
    p.e(f"s_lshl_b32 s{S_T0}, s{S_MD}, 12"); p.e(f"s_lshl_b32 s{S_T1}, s{S_PAR}, 11"); p.e(f"s_add_u32 s{S_T0}, s{S_T0}, s{S_T1}")
    p.e(f"s_lshl_b32 s{S_T1}, {w}, 9"); p.e(f"s_add_u32 s{S_T0}, s{S_T0}, s{S_T1}"); p.e(f"v_add_u32 v{V_ST}, s{S_T0}, v{V_ST}")
    p.e(f"s_cmp_eq_u32 s{S_PAR}, 0"); p.e(f"s_cselect_b32 s{S_SG}, 0x8000, 0"); p.e(f"s_cselect_b32 s{S_B2}, 0, 2.0")
    p.add(p2_scalar())
    st.stamp(p, 0)
    p.wait(regs=vr(XRW))
    p.e(f"s_cmp_lg_u32 {w}, 0"); p.e("s_cbranch_scc1 NOCLR2")
    p.raw("v_mov_b32 v20, 0\nv_mov_b32 v21, 1\ns_mov_b64 exec, 1\nglobal_atomic_add v20, v21, s[24:25] sc1\ns_mov_b64 exec, -1")
    p.e("NOCLR2:")
    p.mark("dft_ln")
    ln_groups(p, 4, XRW, LN, V_XWd, [0, 128, 8192, 8192+128], vmq, True, False, 1, 5)
    assert not vmq
    st.stamp(p, 1)
    p.wait(vm=["d0"], lg="all"); p.e("s_barrier")
    def dread(j, cb):
        kc = j >> 1
        return Ins(f"ds_read_b128 {vr(DF + 16*(j & 1) + 4*cb)}, v{V_DR + (j & 1)} offset:{(kc % 3)*8192 + cb*2048}", f"dr{j}")
    def xread(i):
        j, rb = i >> 3, i & 7
        return Ins(f"ds_read_b128 {vr(XFd + 4*rb)}, v{V_XRd + (j & 1)} offset:{rb*8192 + j*1024}")
    for cb in range(4): p.add(dread(0, cb))
    PF = 4
    for i in range(PF): p.add(xread(i))
    G = 20; o = []
    o += [f"v_and_b32 v{t0}, 15, v0", f"v_cvt_f32_u32 v{t0}, v{t0}", f"v_mul_f32 v{t0}, {f2u(1/32):#x}, v{t0}", f"v_lshlrev_b32 v{t2}, 2, v{t2}", f"v_cvt_f32_u32 v{t2}, v{t2}"]
    for tb in range(2):
        if tb: o.append(f"v_add_f32 v{t0}, 0.5, v{t0}")
        o += [f"v_add_f32 v{G+q}, {f2u(float(16*(q//4) + q % 4)):#x}, v{t2}" for q in range(8)]
        o += [f"v_mul_f32 v{G+q}, v{t0}, v{G+q}" for q in range(8)]
        o += [f"v_fract_f32 v{G+q}, v{G+q}" for q in range(8)]
        for q in range(8): o += [f"v_cos_f32 v{G+8+q}, v{G+q}", f"v_sin_f32 v{G+16+q}, v{G+q}"]
        for d in range(4): o += [f"v_cvt_pk_bf16_f32 v{G+d}, v{G+8+2*d}, v{G+9+2*d}", f"v_cvt_pk_bf16_f32 v{G+4+d}, v{G+16+2*d}, v{G+17+2*d}"]
        for d in range(4): o += [f"v_accvgpr_write_b32 a{CF+4*tb+d}, v{G+d}", f"v_accvgpr_write_b32 a{CF+8+4*tb+d}, v{G+4+d}", f"v_xor_b32 v{G+d}, 0x80008000, v{G+d}"]
        o += [f"v_accvgpr_write_b32 a{CF+16+4*tb+d}, v{G+d}" for d in range(4)]
    qv = Q(o, ooo=True)
    p.mark("dft_mm")
    st.stamp(p, 2)
    for j in range(8):
        mf = []; pin = {g: [] for g in range(32)}
        for rb in range(8):
            i = 8*j + rb
            for cb in range(4):
                a = AC + 16*rb + 4*cb
                mf.append(f"{MF} {vr(a)}, {vr(XFd + 4*rb)}, {vr(DF + 16*(j & 1) + 4*cb)}, {vr(a) if j else 0}")
            if i + PF < 64: pin[4*rb].append(xread(i + PF))
            if i + 1 < 64: pin[4*rb+3].append(WAIT(regs=vr(XFd + 4*((i+1) & 7))))
        if j + 1 < 8:
            if j & 1: pin[1].append(WAIT(vm=[f"d{(j+1) >> 1}"]))
            for cb in range(4): pin[2 + 4*cb].append(dread(j+1, cb))
        else: pin[29].append("s_barrier")
        qm = Q(ddma(3) if j == 1 else [], start=5, every=3)
        weave2(p, mf, pin, [qm, qv])
        qm.flush(p)
    qv.flush(p)
    p.mark("dft_s2")
    st.stamp(p, 3)
    BF = 16; R2 = 32; OUT = 64
    def pre(u):
        c16, b = u >> 2, u & 3; bf_ = BF + 8*(u & 1); o = []
        for k, cb in enumerate((c16, 2 + c16)):
            for half in range(2):
                a = AC + 16*(2*b + half) + 4*cb
                o += [f"v_cvt_pk_bf16_f32 v{bf_+4*k+2*half}, v{a}, v{a+1}", f"v_cvt_pk_bf16_f32 v{bf_+4*k+2*half+1}, v{a+2}, v{a+3}"]
        return o
    def mm(u):
        bf_ = BF + 8*(u & 1); r = R2 + 16*(u & 1); o = []
        for tb in range(2): o += [f"{MF} {vr(r+8*tb)}, {ar(CF+4*tb)}, {vr(bf_)}, 0", f"{MF} {vr(r+8*tb+4)}, {ar(CF+8+4*tb)}, {vr(bf_)}, 0"]
        for tb in range(2): o += [f"{MF} {vr(r+8*tb)}, {ar(CF+8+4*tb)}, {vr(bf_+4)}, {vr(r+8*tb)}", f"{MF} {vr(r+8*tb+4)}, {ar(CF+16+4*tb)}, {vr(bf_+4)}, {vr(r+8*tb+4)}"]
        return o
    def post(u):
        c16, b = u >> 2, u & 3; r = R2 + 16*(u & 1)
        return [f"v_cvt_pk_bf16_f32 v{OUT + 32*c16 + 16*tb + 4*i + b}, v{r+8*tb+i}, v{r+8*tb+4+i}" for tb in range(2) for i in range(4)]
    def ast(c16):
        o = []
        for tb in range(2):
            for i in range(4):
                o += [f"s_mov_b32 s{S_T0}, {A_OFF + (16*tb + i)*65536}",
                      Ins(f"buffer_store_dwordx4 {vr(OUT + 32*c16 + 16*tb + 4*i)}, v{V_ST}, {srd(SRD_WS)}, s{S_T0} offen offset:{256*c16} {cfg.aux}", "ast")]
        return o
    p.add(pre(0))
    for u in range(8):
        qv = Q((pre(u+1) if u < 7 else []) + (post(u-1) if u else []))
        weave2(p, mm(u), {}, [qv]); qv.flush(p)
        if u == 4: p.add(ast(0))
    p.add(post(7)); p.add(ast(1))
    st.stamp(p, 4)
    p.mark("dft_p2setup")
    p.e(f"v_mov_b32 v{V_PV}, 1"); p.e(f"v_mov_b32 v{V_FVA}, 0")
    p.add(dbg_load())
    pv = p2_vector(LNB)
    p.add(pv[:19]); p.add(tr2b())
    vmq = []
    for ks in (0, 1, 2, 3, 4, 5, 10, 11): vmq += wd_dma(ks)
    p.e(f"s_lshl_b32 s{S_T0}, s{S_MD}, 7"); p.e(f"s_add_u32 s{S_T0}, s{S_T0}, {FL_OFF + 320*128}")
    p.e(f"v_lshl_add_u32 v{V_FLS}, v0, 24, s{S_T0}")
    p.add(pv[19:])
    p.add(check("clrd", 32, dbg_load()))
    p.add(publish(0, ["ast"]))
    p.e(f"v_mov_b32 v{V_FLS}, {OOB:#x}")
    st.stamp(p, 5)
    p.add(vmq)
    for ks in range(6):
        p.wait(vm=[f"wd{ks}"]); p.add(wd_tr(ks)); p.wait(lg="all"); p.add(wd_dma(ks + 6 if ks < 4 else ks + 8))
    st.stamp(p, 6)
    p.add(flag_load(0))
    p.add(check_q("q0d", 0))
    st.stamp(p, 7)
    p.add([h_load(cfg, 0, n) for n in range(cfg.nh0)])
    p.add([flag_load(1), aflag_load()])
    p.wait(vm="all")
    st.stamp(p, 8)
    p.e("s_branch P2")

def kernel(cfg):
    SLOW.clear()
    st = Stamper(cfg)
    p = Prog(); end = "END"
    p.e("s_cmp_ge_u32 s2, 256"); p.e(f"s_cbranch_scc1 {end}")
    st.first(p)
    p.e("s_load_dwordx16 s[4:19], s[0:1], 0")
    p.e("s_load_dwordx8 s[20:27], s[0:1], 64")
    p.e("v_lshrrev_b32 v1, 6, v0"); p.e("v_and_b32 v0, 63, v0"); p.e(f"v_readfirstlane_b32 {w}, v1")
    AM = cfg.AM; AN = 32 // AM; GM = 16 // AM; GN = 16 // AN
    p.e(f"s_and_b32 s{S_T0}, s2, {GM-1}"); p.e(f"s_mul_i32 s{S_M}, s{S_T0}, {AM}")
    p.e(f"s_bfe_u32 s{S_T0}, s2, {3 | (AM.bit_length()-1) << 16:#x}"); p.e(f"s_add_u32 s{S_M}, s{S_M}, s{S_T0}")
    p.e(f"s_lshr_b32 s{S_N}, s2, {3 + AM.bit_length()-1}"); p.e(f"s_mul_i32 s{S_N}, s{S_N}, {GN}")
    if GN > 1:
        p.e(f"s_bfe_u32 s{S_T0}, s2, {(GM.bit_length()-1) | (GN.bit_length()-1) << 16:#x}"); p.e(f"s_add_u32 s{S_N}, s{S_N}, s{S_T0}")
    p.e(f"s_cmp_ge_u32 s{S_N}, 14"); p.e("s_cbranch_scc1 DFT")
    glu_path(p, cfg, st)
    p.e("P2:")
    phase2(p, cfg, st)
    st.write(p, end)
    p.e(f"{end}:"); p.e("s_endpgm")
    g = p.finalize()
    pd = Prog(); pd.e("DFT:"); dft_path(pd, cfg, st); d = pd.finalize()
    ps = Prog()
    for s in SLOW: ps.raw(s)
    k = K(cfg.name, 256, 256, 160*1024, vgpr=256, agpr=256)
    for it in g + ps.finalize() + d: k.e(it.text)
    print("glu", [(a, b, c) for a, b, c in p.cycles(t0=400, show=getattr(cfg, 'show', 0))], "nops", p.nnop, file=sys.stderr)
    print("dft", pd.cycles(t0=500), "nops", pd.nnop, file=sys.stderr)
    return k

def make(path, single=False, **kw):
    cfg = Cfg(**kw)
    k = kernel(cfg)
    s = build([k])
    if single: s = s.replace(f"; @launch kernel={k.name} grid", "; @launch grid")
    open(path, "w").write(s)
    return k

if __name__ == "__main__":
    make("f1.s"); make("f1_st.s", stamps=True); make("f1_stc.s", stamps=3)
```

```python
import re

RE_REG = re.compile(r'\b([vas])\[(\d+):(\d+)\]|\b([vas])(\d+)\b|\b(vcc|m0|exec)\b')
TRANS = ("v_exp_f32", "v_log_f32", "v_rcp_f32", "v_rsq_f32", "v_sqrt_f32", "v_sin_f32", "v_cos_f32")

def regs_of(s):
    out = []
    for m in RE_REG.finditer(s):
        if m.group(1):
            out += [(m.group(1), i) for i in range(int(m.group(2)), int(m.group(3)) + 1)]
        elif m.group(4):
            out.append((m.group(4), int(m.group(5))))
        else:
            out.append((m.group(6), 0))
    return out

class Ins:
    __slots__ = ("text", "op", "kind", "w", "r", "tag", "srcC", "srcAB", "passes", "raw")
    def __init__(self, text, tag=None, raw=False):
        self.text = text; self.tag = tag; self.raw = raw
        self.srcC = []; self.srcAB = []; self.passes = 0
        body = text.split(";")[0].strip()
        if body.endswith(":") or body.startswith("."):
            self.op = body; self.kind = "label"; self.w = []; self.r = []; return
        parts = body.split(None, 1)
        op = self.op = parts[0]
        ops = [o.strip() for o in parts[1].split(",")] if len(parts) > 1 else []
        R = [regs_of(o) for o in ops]
        allr = [x for l in R for x in l]
        rest = [x for l in R[1:] for x in l]
        if op.startswith("v_mfma"):
            self.kind = "mfma"; self.w = R[0]; self.srcAB = R[1] + R[2]; self.srcC = R[3]; self.r = rest
            self.passes = 4 if "16x16x32" in op else 8
        elif op.startswith("ds_read"):
            self.kind = "ds"; self.w = R[0]; self.r = rest
        elif op.startswith("ds_write"):
            self.kind = "ds"; self.w = []; self.r = allr
        elif op.startswith("ds_"):
            self.kind = "ds"; self.w = R[0]; self.r = rest
        elif op.startswith("buffer_load") or op.startswith("global_load"):
            self.kind = "vm"
            if body.endswith(" lds") or "_lds_" in op:
                self.w = []; self.r = allr + [("m0", 0)]
            else:
                self.w = R[0]; self.r = rest
        elif op.startswith("buffer_store") or op.startswith("global_store") or op.startswith("buffer_atomic") or op.startswith("global_atomic"):
            self.kind = "vm"; self.w = []; self.r = allr
        elif op.startswith("buffer_"):
            self.kind = "vm"; self.w = []; self.r = []
        elif op.startswith("v_"):
            self.kind = "valu"; self.w = list(R[0]); self.r = list(rest)
            if op.startswith("v_fmac") or op.startswith("v_dot2c") or "dpp" in op or "quad_perm" in body or "row_" in body:
                self.r += R[0]
            if op.startswith("v_permlane"):
                self.w = allr; self.r = allr
            if op.startswith("v_cndmask") and len(ops) == 3:
                self.r.append(("vcc", 0))
            if "_co_" in op: self.w = R[0] + R[1]
        elif op.startswith("s_load") or op.startswith("s_mem"):
            self.kind = "smem"; self.w = R[0]; self.r = rest
        elif op in ("s_waitcnt", "s_barrier", "s_nop", "s_endpgm", "s_sleep", "s_setprio") or op.startswith("s_cbranch") or op == "s_branch":
            self.kind = "sctl"; self.w = []; self.r = []
        elif op.startswith("s_cmp"):
            self.kind = "salu"; self.w = []; self.r = allr
        elif op.startswith("s_"):
            self.kind = "salu"; self.w = R[0]; self.r = rest
        else:
            raise Exception("cannot classify: " + text)
    @property
    def trans(self): return self.op.replace("_e32", "").replace("_e64", "") in TRANS
    @property
    def dot(self): return self.op.startswith("v_dot2")
    @property
    def dpp(self): return "quad_perm" in self.text or "row_" in self.text or "dpp" in self.op
    @property
    def widestore(self): return self.kind == "vm" and "store" in self.op and ("x4" in self.op or "x3" in self.op)
    def states(self):
        if self.kind == "label": return 0
        if self.op == "s_nop": return int(self.text.split()[1]) + 1
        return 1

class Prog:
    def __init__(self):
        self.items = []
    def e(self, text, tag=None):
        for l in text.split("\n"):
            l = l.strip()
            if l: self.items.append(Ins(l, tag))
    def raw(self, text):
        for l in text.split("\n"):
            l = l.strip()
            if l: self.items.append(Ins(l, None, raw=True))
    def add(self, it):
        if isinstance(it, str): self.e(it)
        elif isinstance(it, (list,)):
            for x in it: self.add(x)
        else: self.items.append(it)
    def wait(self, vm=None, regs=None, lg=None): self.items.append(("WAIT", vm, regs, lg))
    def mark(self, name): self.items.append(("MARK", name))

    def finalize(self, verbose=False):
        out = []; vmq = []; lgq = []; nnop = 0; marks = []
        def emit_wait(nv, nl):
            parts = []
            if nv is not None:
                nv = min(nv, 63); parts.append(f"vmcnt({nv})");
                del vmq[:max(0, len(vmq) - nv)]
            if nl is not None:
                nl = min(nl, 15); parts.append(f"lgkmcnt({nl})")
                del lgq[:max(0, len(lgq) - nl)]
            if parts: out.append(Ins("s_waitcnt " + " ".join(parts)))
        def need(q, regs):
            regs = set(regs); n = None
            for i, o in enumerate(q):
                if regs & set(o.w): n = len(q) - 1 - i
            return n
        def needtag(q, tags):
            if not isinstance(tags, (list, tuple, set)): tags = [tags]
            n = None
            for i, o in enumerate(q):
                if o.tag in tags: n = len(q) - 1 - i
            return n
        mn = lambda a, b: b if a is None else (a if b is None else min(a, b))
        for it in self.items:
            if isinstance(it, tuple):
                if it[0] == "MARK":
                    marks.append((it[1], len(out))); continue
                _, vm, regs, lg = it
                nv = nl = None
                if vm == "all": nv = 0 if vmq else None
                elif vm is not None: nv = needtag(vmq, vm)
                if lg == "all": nl = 0 if lgq else None
                elif lg is not None: nl = needtag(lgq, lg)
                if regs:
                    rr = regs_of(regs) if isinstance(regs, str) else regs
                    nv = mn(nv, need(vmq, rr)); nl = mn(nl, need(lgq, rr))
                emit_wait(nv, nl); continue
            if not it.raw:
                if it.op == "s_waitcnt":
                    m = re.search(r'vmcnt\((\d+)\)', it.text)
                    if m: del vmq[:max(0, len(vmq) - int(m.group(1)))]
                    m = re.search(r'lgkmcnt\((\d+)\)', it.text)
                    if m: del lgq[:max(0, len(lgq) - int(m.group(1)))]
                touch = it.r + it.w
                emit_wait(need(vmq, touch), need(lgq, touch))
            pad = hazard(out, it)
            if pad > 0:
                nnop += pad
                if verbose: print(f"   pad {pad} before: {it.text}")
                while pad > 0:
                    n = min(pad, 16); out.append(Ins(f"s_nop {n-1}")); pad -= n
            out.append(it)
            if not it.raw:
                if it.kind == "vm":
                    vmq.append(it)
                    assert len(vmq) <= 63, "too many VMEM outstanding at " + it.text
                elif it.kind == "ds": lgq.append(it)
        self.out = out; self.marks = marks; self.nnop = nnop
        return out

    def cycles(self, L=630, svc=72, cap=10, Lst=800, Lds=100, t0=0, show=0):
        t = t0; vec_ok = 0; mem_ok = 0; mf_ok = 0; mf_done = 0
        res = []; mi = 0; vq = []; lq = []; last = 0; stall = 0
        for i, it in enumerate(self.out):
            while mi < len(self.marks) and self.marks[mi][1] == i:
                res.append((self.marks[mi][0], t, stall)); mi += 1
            if it.raw or it.kind == "label": continue
            k = it.kind
            if k == "mfma":
                t = max(t, vec_ok, mf_ok); mf_ok = t + 4*it.passes; mf_done = mf_ok + 13; vec_ok = t + 8; mem_ok = t + 4; t += 4
            elif k == "valu":
                t = max(t, vec_ok)
                if it.dot or it.op.startswith("v_pk"): t = max(t, mf_done)
                c = 8 if it.trans else 4
                t += c; vec_ok = t; mem_ok = t + 4
            elif k in ("ds", "vm"):
                t = max(t, mem_ok)
                big = ("write_b128" in it.op) or it.widestore
                mid = ("write_b64" in it.op) or ("store_dwordx2" in it.op)
                c = 24 if big else (16 if mid else 8)
                if k == "vm":
                    if "store" in it.op or "atomic" in it.op: done = max(t + (Lst if "sc1" in it.text else 450), vq[-1] if vq else 0)
                    else:
                        act = [d for d in vq if d > t]
                        if len(act) >= cap:
                            nt = act[len(act) - cap]; stall += nt - t
                            if show and nt - t >= show: print(f"   t={t} issue stall {nt-t}: {it.text}")
                            t = nt
                        sv = svc if "x4" in it.op else svc // 2
                        last = max(t + L, last + sv); done = max(last, vq[-1] if vq else 0)
                    vq.append(done)
                else: lq.append(t + Lds)
                vec_ok = max(vec_ok, t + c); mem_ok = t + (c - 4); t += 4
            elif it.op == "s_waitcnt":
                nt = t
                m = re.search(r'vmcnt\((\d+)\)', it.text)
                if m and len(vq) > int(m.group(1)): nt = max(nt, vq[len(vq) - int(m.group(1)) - 1])
                m = re.search(r'lgkmcnt\((\d+)\)', it.text)
                if m and len(lq) > int(m.group(1)): nt = max(nt, lq[len(lq) - int(m.group(1)) - 1])
                d = max(0, nt - max(t, mf_ok - 4)); stall += d
                if show and d >= show: print(f"   t={t} wait stall {d}: {it.text} -> {self.out[i+1].text}")
                t = nt + 4
            elif it.op == "s_nop": t += 4*it.states()
            else: t += 4
        while mi < len(self.marks):
            res.append((self.marks[mi][0], t, stall)); mi += 1
        res.append(("end", t, stall))
        return res

def hazard(out, it):
    if it.kind in ("label", "sctl"): return 0
    R = set(it.r); W = set(it.w); need = 0; d = 0
    isv = lambda s: {x for x in s if x[0] in "va" and x[0] != "vcc"}
    for p in reversed(out):
        if d >= 20: break
        if p.kind == "label": continue
        pw = set(p.w); req = 0
        if p.kind == "mfma":
            big = p.passes == 8
            if it.kind == "mfma":
                if pw & set(it.srcAB): req = 12 if big else 8
                elif pw & set(it.srcC):
                    req = 0 if (p.w == it.srcC and p.passes == it.passes) else (10 if big else 6)
                elif pw & W and p.w != it.w: req = 10 if big else 6
            elif pw & (R | W): req = 12 if big else 8
            if it.kind == "valu" and set(p.srcC) & W: req = max(req, 7 if big else 3)
        elif p.kind == "valu":
            pv = {x for x in pw if x[0] in ("v", "a")}; ps = pw - pv
            if p.dot and pv & (R | W):
                same = it.op == p.op
                if same:
                    ops = [o.strip() for o in it.text.split(None, 1)[1].split(",")]
                    ab = set(regs_of(ops[1]) + regs_of(ops[2]))
                    req = 3 if pv & ab else 0
                else: req = 3
            if pv & R:
                if it.kind == "mfma": req = max(req, 2)
                if it.kind == "valu" and (it.dpp or it.op.startswith("v_permlane")): req = max(req, 2)
                if it.op.startswith("v_readfirstlane") or it.op.startswith("v_readlane"): req = max(req, 1)
                if p.trans and not (it.kind == "valu" and it.trans): req = max(req, 1)
            if ps & R:
                if it.kind == "vm": req = max(req, 5)
                elif it.kind == "valu": req = max(req, 2)
                elif it.kind in ("salu", "smem"): req = max(req, 2)
        elif p.kind == "salu":
            if ("m0", 0) in pw and ("m0", 0) in R and it.kind in ("vm", "ds"): req = 1
        elif p.kind == "vm" and p.widestore:
            if set(p.r) & W: req = 2
        need = max(need, req - d)
        d += p.states()
    return need

def gapcost(items):
    t = 4; vec_ok = 8; mem_ok = 4
    for it in items:
        if isinstance(it, tuple):
            if it[0] == "WAIT": t += 4
            continue
        k = it.kind
        if k == "valu":
            t = max(t, vec_ok); t += 8 if it.trans else 4; vec_ok = t; mem_ok = t + 4
        elif k in ("ds", "vm"):
            t = max(t, mem_ok)
            big = ("write_b128" in it.op) or it.widestore
            mid = ("write_b64" in it.op) or ("store_dwordx2" in it.op)
            c = 24 if big else (16 if mid else 8)
            vec_ok = max(vec_ok, t + c); mem_ok = t + c - 4; t += 4
        else: t += 4
    return max(t, vec_ok)

def I(x, tag=None):
    return Ins(x, tag) if isinstance(x, str) else x

def weave(p, mfmas, pinned=None, queue=None, cap=16, start=0, flush=True):
    pinned = pinned or {}
    queue = queue if queue is not None else []
    for g, m in enumerate(mfmas):
        p.add(I(m))
        cur = [I(x) if isinstance(x, str) else x for x in pinned.get(g, [])]
        while queue and g >= start:
            nx = queue[0]
            nx = I(nx) if isinstance(nx, str) else nx
            if not isinstance(nx, tuple) and nx.kind in ("ds", "vm"):
                if any((not isinstance(c, tuple)) and c.kind in ("valu", "ds", "vm") for c in cur): break
                cur.append(nx); queue.pop(0); continue
            if gapcost(cur + [nx]) > cap: break
            cur.append(nx); queue.pop(0)
        for c in cur: p.add(c)
    if flush:
        while queue: p.add(I(queue.pop(0)) if isinstance(queue[0], str) else queue.pop(0))


class Q:
    def __init__(self, items=None, ooo=False, start=0, every=1):
        self.items = [I(x) if isinstance(x, str) else x for x in flat(items or [])]
        self.ooo = ooo; self.start = start; self.every = every; self.last = -99
    def extend(self, items): self.items += [I(x) if isinstance(x, str) else x for x in flat(items)]
    def cands(self):
        if not self.items: return
        yield 0
        if not self.ooo: return
        seenR = set(); seenW = set()
        for i, it in enumerate(self.items[:40]):
            if isinstance(it, tuple) or it.kind not in ("valu", "salu", "vm"): return
            if i and it.kind == "valu":
                R, W = set(it.r), set(it.w)
                if not (R & seenW or W & seenR or W & seenW): yield i
            seenR |= set(it.r); seenW |= set(it.w)
    def flush(self, p):
        while self.items: p.add(self.items.pop(0))

def flat(l):
    o = []
    for x in l:
        if isinstance(x, list): o += flat(x)
        else: o.append(x)
    return o

def ismem(x): return (not isinstance(x, tuple)) and x.kind in ("ds", "vm")
def isvalu(x): return (not isinstance(x, tuple)) and x.kind == "valu"

def weave2(p, mfmas, pinned=None, queues=(), cap=16):
    pinned = pinned or {}
    for q in queues: q.last = -99
    for g, m in enumerate(mfmas):
        p.add(I(m))
        cur = []
        for x in flat(pinned.get(g, [])):
            if isinstance(x, Q):
                cur += x.items; x.items = []
            else: cur.append(I(x) if isinstance(x, str) else x)
        progress = True
        while progress:
            progress = False
            for q in queues:
                if g < q.start: continue
                for i in q.cands():
                    nx = q.items[i]
                    if ismem(nx):
                        if any(isvalu(c) for c in cur): continue
                        if nx.kind == "vm" and g - q.last < q.every: continue
                        big = gapcost([nx]) > cap
                        if big and any(ismem(c) for c in cur): continue
                        if not big and gapcost(cur + [nx]) > cap: continue
                        if nx.kind == "vm": q.last = g
                    elif gapcost(cur + [nx]) > cap: continue
                    cur.append(q.items.pop(i)); progress = True
                    break
                if progress: break
        for c in cur: p.add(c)
```

```python
import sys, gen2
from asmlib import *
from diag import spin2
def mk(prefix, cases, **kw):
    a = gen2.kernel(gen2.Cfg(stamps=True, **kw))
    for n, c in cases.items():
        open(f"{prefix}_{n}.s", "w").write(build([a, spin2(*c)]))
if __name__ == "__main__":
    mk("dg", {"0": (0,"min",0,"min"), "1": (0,"min",0,"max"), "2": (0,"min",6,"avg"), "3": (0,"min",8,"avg"), "4": (0,"min",12,"avg"), "5": (0,"min",1,"max")})
```
